```python
import torch

def _softmax(x, axis=-1):
    return torch.softmax(x, dim=axis)
def _gelu(x):
    return torch.nn.functional.gelu(x, approximate="tanh")
def _silu(x):
    return torch.nn.functional.silu(x)
def _sigmoid(x):
    return torch.sigmoid(x)
def _layernorm(x, axis=-1, eps=1e-5):
    m = x.mean(dim=axis, keepdim=True)
    v = x.var(dim=axis, keepdim=True, unbiased=False)
    return (x - m) / torch.sqrt(v + eps)
def _scatter_add(tgt, idx, src, axis=0):
    return tgt.clone().index_add_(axis, idx, src)
def _segment_sum(src, seg, n):
    out = torch.zeros((n,) + src.shape[1:], dtype=src.dtype)
    return out.index_add_(0, seg, src)
def _pad(x, pw):
    flat = tuple(v for pair in reversed(pw) for v in pair)
    return torch.nn.functional.pad(x, flat)

kernel_name = 'standalone__mixer_token_mlp__prompt'

def setup_inputs():

    _w = (lambda a: (lambda t: t.to(torch.bfloat16) if t.is_floating_point() else t)(torch.as_tensor(a)))
    B, S, D, F = 1, 2048, 512, 1792
    return {
        "x": _w((lambda *s: torch.randn(*s, dtype=torch.bfloat16) * 0.05)(B, S, D)),
        "w1": _w((lambda *s: torch.randn(*s, dtype=torch.bfloat16) * 0.2)(S, F) * (S ** -0.5)),
        "b1": _w((lambda *s: torch.randn(*s, dtype=torch.bfloat16) * 3.2)(F) * 0.02),
        "w2": _w((lambda *s: torch.randn(*s, dtype=torch.bfloat16) * 0.05)(F, S) * (F ** -0.5)),
        "b2": _w((lambda *s: torch.randn(*s, dtype=torch.bfloat16) * 0.1)(S) * 0.02),
    }

def reference(x, w1, b1, w2, b2):
    B, S, D = x.shape
    h = _layernorm(x, axis=-1)
    u = torch.einsum("bsd,sf->bdf", h, w1) + b1
    u = _gelu(u)
    y = torch.einsum("bdf,fs->bds", u, w2) + b2
    return (lambda x, *d: x.permute(*d))(y, 0, 2, 1)
```

```python
class K:
    def __init__(self):
        self.lines = []
        self.vm = []
        self.lg = []
    def e(self, s):
        for l in s.split("\n"):
            l = l.strip()
            if not l: continue
            if l.endswith(":") or l.startswith("."):
                self.lines.append(l)
            else:
                self.lines.append("    " + l)
    def c(self, s):
        self.lines.append("    ; " + s)
    def vmi(self, s, tag):
        self.e(s); self.vm.append(tag)
        assert len(self.vm) <= 63, "too many outstanding vmem"
    def lgi(self, s, tag):
        self.e(s); self.lg.append(tag)
    def _need(self, q, tags):
        idx = -1
        for i, t in enumerate(q):
            if t in tags: idx = i
        return idx
    def wait(self, vm=(), lg=()):
        parts = []
        if isinstance(vm, (str, tuple)) and not (isinstance(vm, tuple) and len(vm) == 0): vm = [vm]
        if isinstance(lg, (str, tuple)) and not (isinstance(lg, tuple) and len(lg) == 0): lg = [lg]
        i = self._need(self.vm, list(vm))
        if i >= 0:
            n = len(self.vm) - 1 - i
            parts.append(f"vmcnt({n})")
            self.vm = self.vm[i + 1:]
        i = self._need(self.lg, list(lg))
        if i >= 0:
            n = len(self.lg) - 1 - i
            n2 = min(n, 15)
            parts.append(f"lgkmcnt({n2})")
            self.lg = self.lg[len(self.lg) - n2:] if n2 > 0 else []
        if parts:
            self.e("s_waitcnt " + " ".join(parts))
    def wait_all(self, vm=True, lg=True):
        parts = []
        if vm: parts.append("vmcnt(0)"); self.vm = []
        if lg: parts.append("lgkmcnt(0)"); self.lg = []
        self.e("s_waitcnt " + " ".join(parts))
    def text(self):
        return "\n".join(self.lines) + "\n"

def kd(name, vgpr, sgpr, accum, extra=""):
    return f""".amdhsa_kernel {name}
  .amdhsa_next_free_vgpr {vgpr}
  .amdhsa_next_free_sgpr {sgpr}
  .amdhsa_accum_offset {accum}
  .amdhsa_group_segment_fixed_size 0
  .amdhsa_kernarg_size 64
  .amdhsa_user_sgpr_count 2
  .amdhsa_user_sgpr_kernarg_segment_ptr 1
  .amdhsa_system_sgpr_workgroup_id_x 1
  .amdhsa_float_denorm_mode_32 3
{extra}.end_amdhsa_kernel
"""

HEADER = """; Kernarg layout for this problem (64 bytes, ptrs only, base s[0:1]):
"""
```

```python
import sys
from asmlib import *

HOFF = 0x000000
UOFF = 0x200000
STAMP = 0x800000
STAMPS = int(sys.argv[2]) if len(sys.argv) > 2 else 0

def bf16r(k, dst, src):
    k.e(f"v_cvt_pk_bf16_f32 {dst}, {src}, {src}")
    k.e(f"v_lshlrev_b32 {dst}, 16, {dst}")

def wave_reduce2(k, a, b, t):
    k.e("s_nop 1")
    k.e(f"v_permlane32_swap_b32 {a}, {b}")
    k.e(f"v_add_f32 {a}, {a}, {b}")
    k.e(f"v_mov_b32 {t}, {a}")
    k.e("s_nop 1")
    k.e(f"v_permlane16_swap_b32 {a}, {t}")
    k.e(f"v_add_f32 {a}, {a}, {t}")
    for m in ["quad_perm:[1,0,3,2]", "quad_perm:[2,3,0,1]", "row_half_mirror", "row_mirror"]:
        k.e("s_nop 1")
        k.e(f"v_add_f32_dpp {a}, {a}, {a} {m} row_mask:0xf bank_mask:0xf")

def ln_kernel():
    k = K()
    k.e(".p2align 8\n.type ln_kernel,@function\nln_kernel:")
    k.e("s_cmp_ge_u32 s2, 256\ns_cbranch_scc1 L_ln_done")
    k.e("s_load_dwordx2 s[4:5], s[0:1], 0")
    k.e("s_load_dwordx2 s[6:7], s[0:1], 56")
    k.e("v_lshrrev_b32 v1, 6, v0")
    k.e("v_and_b32 v2, 63, v0")
    k.e("v_lshlrev_b32 v3, 4, v2")
    k.e("v_lshl_add_u32 v3, v1, 11, v3")
    k.e("s_lshl_b32 s3, s2, 13")
    k.e("v_add_u32 v12, s3, v3")
    k.e("s_waitcnt lgkmcnt(0)")
    k.e("global_load_dwordx4 v[4:7], v12, s[4:5]")
    k.e("global_load_dwordx4 v[8:11], v12, s[4:5] offset:1024")
    k.e("v_lshlrev_b32 v13, 5, v2")
    k.e("v_lshl_add_u32 v13, v1, 11, v13")
    k.e("v_lshlrev_b32 v14, 2, v0")
    k.e("v_and_b32 v15, 31, v0")
    k.e("v_lshlrev_b32 v15, 4, v15")
    k.e("v_bfe_u32 v16, v0, 5, 1")
    k.e("v_lshl_add_u32 v15, v16, 10, v15")
    k.e("v_lshl_add_u32 v15, v1, 18, v15")
    k.e("s_lshr_b32 s8, s2, 1\ns_lshl_b32 s8, s8, 11\ns_and_b32 s9, s2, 1\ns_lshl_b32 s9, s9, 9\ns_add_u32 s8, s8, s9")
    k.e("v_add_u32 v15, s8, v15")
    k.e(f"v_add_u32 v16, {4*262144}, v15")
    k.e("s_mov_b32 s10, 0xffff0000")
    k.e("s_waitcnt vmcnt(0)")
    for r in range(2):
        for j in range(4):
            src = 4 + 4 * r + j
            k.e(f"v_lshlrev_b32 v{20+8*r+2*j}, 16, v{src}")
            k.e(f"v_and_b32 v{20+8*r+2*j+1}, s10, v{src}")
    for r in range(2):
        b = 20 + 8 * r
        k.e(f"v_add_f32 v{40+4*r}, v{b}, v{b+1}")
        k.e(f"v_add_f32 v{41+4*r}, v{b+2}, v{b+3}")
        k.e(f"v_add_f32 v{42+4*r}, v{b+4}, v{b+5}")
        k.e(f"v_add_f32 v{43+4*r}, v{b+6}, v{b+7}")
    for r in range(2):
        k.e(f"v_add_f32 v{40+4*r}, v{40+4*r}, v{41+4*r}")
        k.e(f"v_add_f32 v{42+4*r}, v{42+4*r}, v{43+4*r}")
    for r in range(2):
        k.e(f"v_add_f32 v{40+4*r}, v{40+4*r}, v{42+4*r}")
    wave_reduce2(k, "v40", "v44", "v41")
    k.e("v_mul_f32 v40, 0x3b000000, v40")
    k.e("s_nop 0")
    k.e("v_readlane_b32 s12, v40, 0")
    k.e("v_readlane_b32 s13, v40, 32")
    bf16r(k, "v48", "v40")
    k.e("s_nop 0")
    for r in range(2):
        b = 20 + 8 * r
        for j in range(8):
            k.e(f"v_subrev_f32 v{50+8*r+j}, s{12+r}, v{b+j}")
    for r in range(2):
        k.e(f"v_mul_f32 v{41+4*r}, v{50+8*r}, v{50+8*r}")
        k.e(f"v_mul_f32 v{42+4*r}, v{51+8*r}, v{51+8*r}")
    for j in range(2, 8, 2):
        for r in range(2):
            k.e(f"v_fmac_f32 v{41+4*r}, v{50+8*r+j}, v{50+8*r+j}")
            k.e(f"v_fmac_f32 v{42+4*r}, v{51+8*r+j}, v{51+8*r+j}")
    for r in range(2):
        k.e(f"v_add_f32 v{41+4*r}, v{41+4*r}, v{42+4*r}")
    k.e("v_readlane_b32 s14, v48, 0")
    k.e("v_readlane_b32 s15, v48, 32")
    wave_reduce2(k, "v41", "v45", "v42")
    k.e("v_mul_f32 v41, 0x3b000000, v41")
    bf16r(k, "v41", "v41")
    k.e("v_add_f32 v41, 0x3727c5ac, v41")
    bf16r(k, "v41", "v41")
    k.e("v_sqrt_f32 v41, v41")
    k.e("s_nop 0")
    bf16r(k, "v41", "v41")
    k.e("v_rcp_f32 v41, v41")
    for j in range(8):
        k.e(f"v_subrev_f32 v{50+j}, s14, v{20+j}")
        k.e(f"v_subrev_f32 v{58+j}, s15, v{28+j}")
    k.e("v_readlane_b32 s16, v41, 0")
    k.e("v_readlane_b32 s17, v41, 32")
    for j in range(8):
        k.e(f"v_cvt_pk_bf16_f32 v{20+j}, v{50+j}, v{58+j}")
    for j in range(8):
        k.e(f"v_lshlrev_b32 v{50+j}, 16, v{20+j}")
        k.e(f"v_and_b32 v{58+j}, s10, v{20+j}")
    for j in range(8):
        k.e(f"v_mul_f32 v{50+j}, s16, v{50+j}")
        k.e(f"v_mul_f32 v{58+j}, s17, v{58+j}")
    for j in range(8):
        k.e(f"v_cvt_pk_bf16_f32 v{20+j}, v{50+j}, v{58+j}")
    k.e("ds_write_b128 v13, v[20:23]")
    k.e("ds_write_b128 v13, v[24:27] offset:16")
    k.e("s_waitcnt lgkmcnt(0)\ns_barrier")
    k.e("ds_read2st64_b32 v[4:5], v14 offset0:0 offset1:8")
    k.e("ds_read2st64_b32 v[6:7], v14 offset0:16 offset1:24")
    k.e("ds_read2st64_b32 v[8:9], v14 offset0:4 offset1:12")
    k.e("ds_read2st64_b32 v[10:11], v14 offset0:20 offset1:28")
    k.e("s_waitcnt lgkmcnt(2)")
    k.e("global_store_dwordx4 v15, v[4:7], s[6:7]")
    k.e("s_waitcnt lgkmcnt(0)")
    k.e("global_store_dwordx4 v16, v[8:11], s[6:7]")
    k.e("L_ln_done:\ns_endpgm")
    return k.text()

def gemm_kernel(which):
    G1 = which == 1
    name = "gemm1_kernel" if G1 else "gemm2_kernel"
    woff = 8 if G1 else 24
    wstride = 3584 if G1 else 4096
    NK = 32 if G1 else 28
    nwg = 224 if G1 else 256
    ntx = 7 if G1 else 8
    actoff = HOFF if G1 else UOFF
    dtstride = NK * 4 * 2048
    k = K()
    k.e(f".p2align 8\n.type {name},@function\n{name}:")
    k.e(f"s_cmp_ge_u32 s2, {nwg}\ns_cbranch_scc1 L_{name}_done")
    k.e(f"s_load_dwordx4 s[4:7], s[0:1], {woff}")
    k.e("s_load_dwordx2 s[12:13], s[0:1], 56")
    k.e("s_load_dwordx2 s[28:29], s[0:1], 40")
    k.e("s_and_b32 s16, s2, 7\ns_lshr_b32 s17, s2, 3")
    k.e("s_and_b32 s18, s16, 1\ns_lshl_b32 s18, s18, 2\ns_and_b32 s19, s17, 3\ns_add_u32 s18, s18, s19")
    k.e(f"s_lshr_b32 s19, s16, 1\ns_mul_i32 s19, s19, {ntx}\ns_lshr_b32 s20, s17, 2\ns_add_u32 s19, s19, s20")
    k.e("v_lshrrev_b32 v1, 6, v0\nv_and_b32 v2, 63, v0")
    k.e("s_nop 0")
    k.e("v_readfirstlane_b32 s21, v1")
    k.e("v_lshrrev_b32 v4, 3, v2")
    k.e(f"v_mul_u32_u24 v3, {wstride}, v4")
    k.e("v_bfe_u32 v4, v2, 4, 1\nv_lshlrev_b32 v4, 2, v4")
    k.e("v_and_b32 v5, 7, v2\nv_xor_b32 v4, v4, v5")
    k.e("v_lshl_add_u32 v3, v4, 4, v3")
    k.e(f"s_mul_i32 s22, s21, {NK*16*wstride}\ns_lshl_b32 s23, s19, 7\ns_add_u32 s22, s22, s23")
    k.e("s_lshl_b32 s23, s21, 15")
    k.e("v_lshrrev_b32 v6, 5, v2")
    k.e(f"v_lshlrev_b32 v6, {10 if G1 else 9}, v6")
    k.e("v_bfe_u32 v7, v2, 2, 2\nv_lshl_add_u32 v6, v7, 7, v6")
    k.e("v_bfe_u32 v7, v2, 4, 1\nv_lshl_add_u32 v6, v7, 5, v6")
    k.e("v_and_b32 v7, 3, v2\nv_lshl_add_u32 v6, v7, 3, v6")
    k.e("v_add_u32 v6, s23, v6")
    k.e("v_bfe_u32 v7, v2, 3, 1")
    k.e("v_xor_b32 v7, v7, v1\nv_and_b32 v7, 1, v7")
    k.e("v_lshl_add_u32 v4, v7, 6, v6")
    k.e("v_xor_b32 v5, 64, v4")
    k.e("v_lshrrev_b32 v8, 1, v1")
    k.e("v_lshlrev_b32 v6, 4, v2\nv_lshl_add_u32 v6, v8, 10, v6")
    k.e("v_xor_b32 v7, 0x400, v6")
    k.e(f"s_mul_i32 s24, s18, {dtstride}\ns_mul_i32 s25, s21, {NK*2048}\ns_add_u32 s24, s24, s25")
    if actoff: k.e(f"s_add_u32 s24, s24, {actoff}")
    for i in range(64):
        k.e(f"v_mov_b32 v{192+i}, 0")
    k.e("s_waitcnt lgkmcnt(0)")
    k.e("s_mov_b32 s8, s4\ns_mov_b32 s9, s5\ns_mov_b32 s10, 7340032\ns_mov_b32 s11, 0x20000")
    k.e("s_mov_b32 s14, 0x1000000\ns_mov_b32 s15, 0x20000")
    if G1:
        k.e("v_and_b32 v8, 1, v1\nv_lshlrev_b32 v8, 6, v8")
        k.e("v_lshrrev_b32 v9, 5, v2\nv_lshl_add_u32 v8, v9, 3, v8")
        k.e("s_lshl_b32 s26, s19, 7\nv_add_u32 v8, s26, v8")
        for g in range(4):
            k.vmi(f"global_load_dwordx2 v[{48+2*g}:{49+2*g}], v8, s[6:7] offset:{16*g}", "bias")
    else:
        k.e("v_and_b32 v8, 1, v1\nv_lshlrev_b32 v8, 5, v8")
        k.e("v_and_b32 v9, 31, v2\nv_add_u32 v8, v8, v9")
        k.e("s_lshl_b32 s26, s19, 6\nv_add_u32 v8, s26, v8")
        k.e("v_lshlrev_b32 v9, 1, v8")
        k.vmi("global_load_ushort v48, v9, s[6:7]", "bias")
    D = 14
    def issue(t):
        for h in range(2):
            i = 2 * t + h
            k.e(f"s_add_u32 m0, s23, {(i % 32) * 1024}")
            if i > 0: k.e(f"s_add_u32 s22, s22, {8*wstride}")
            else: k.e("s_nop 0")
            k.vmi(f"buffer_load_dwordx4 v3, s[8:11], s22 offen lds", ("W", t))
        if t > 0 and t % 2 == 0: k.e("s_add_u32 s24, s24, 4096")
        for b in range(2):
            r = 64 + (t % 16) * 8 + 4 * b
            k.vmi(f"buffer_load_dwordx4 v[{r}:{r+3}], v{6+b}, s[12:15], s24 offen offset:{(t%2)*2048}", ("B", t))
    def trread(t):
        k.wait(vm=("W", t))
        o2 = 512 if G1 else 1024
        for a in range(2):
            r = 16 + (t % 4) * 8 + 4 * a
            k.lgi(f"ds_read_b64_tr_b16 v[{r}:{r+1}], v{4+a} offset:{(t%16)*2048}", ("A", t))
            k.lgi(f"ds_read_b64_tr_b16 v[{r+2}:{r+3}], v{4+a} offset:{(t%16)*2048+o2}", ("A", t))
    for t in range(D): issue(t)
    trread(0); trread(1)
    for t in range(NK):
        if t + 2 < NK: trread(t + 2)
        k.wait(vm=("B", t), lg=("A", t))
        for b in range(2):
            for a in range(2):
                ra = 16 + (t % 4) * 8 + 4 * a
                rb = 64 + (t % 16) * 8 + 4 * b
                acc = 192 + 16 * (a + 2 * b)
                if G1:
                    k.e(f"v_mfma_f32_32x32x16_bf16 v[{acc}:{acc+15}], v[{ra}:{ra+3}], v[{rb}:{rb+3}], v[{acc}:{acc+15}]")
                else:
                    k.e(f"v_mfma_f32_32x32x16_bf16 v[{acc}:{acc+15}], v[{rb}:{rb+3}], v[{ra}:{ra+3}], v[{acc}:{acc+15}]")
        if t + D < NK: issue(t + D)
    k.wait_all()
    k.e("v_lshlrev_b32 v10, 4, v2\nv_add_u32 v10, s23, v10")
    for j in range(1, 4):
        k.e(f"v_xor_b32 v{10+j}, {j << 15}, v10")
    k.e("s_nop 15")
    for j in range(1, 4):
        for q in range(4):
            r = 192 + 16 * j + 4 * q
            k.e(f"ds_write_b128 v10, v[{r}:{r+3}] offset:{(j-1)*4096+q*1024}")
    k.e("s_waitcnt lgkmcnt(0)\ns_barrier")
    for j in range(1, 4):
        for q in range(4):
            r = 64 + 16 * (j - 1) + 4 * q
            k.e(f"ds_read_b128 v[{r}:{r+3}], v{10+j} offset:{(j-1)*4096+q*1024}")
    k.e("s_waitcnt lgkmcnt(0)")
    for i in range(16):
        k.e(f"v_add_f32 v{64+i}, v{64+i}, v{80+i}")
        k.e(f"v_add_f32 v{192+i}, v{192+i}, v{96+i}")
    for i in range(16):
        k.e(f"v_add_f32 v{192+i}, v{192+i}, v{64+i}")
    k.e("s_mov_b32 s26, 0xffff0000")
    for i in range(0, 16, 2):
        k.e(f"v_cvt_pk_bf16_f32 v{64+i//2}, v{192+i}, v{193+i}")
    for i in range(0, 16, 2):
        k.e(f"v_lshlrev_b32 v{192+i}, 16, v{64+i//2}")
        k.e(f"v_and_b32 v{193+i}, s26, v{64+i//2}")
    if G1:
        for i in range(0, 16, 2):
            k.e(f"v_lshlrev_b32 v{80+i}, 16, v{48+i//2}")
            k.e(f"v_and_b32 v{81+i}, s26, v{48+i//2}")
        for i in range(16):
            k.e(f"v_add_f32 v{192+i}, v{192+i}, v{80+i}")
        for i in range(0, 16, 2):
            k.e(f"v_cvt_pk_bf16_f32 v{64+i//2}, v{192+i}, v{193+i}")
        for i in range(0, 16, 2):
            k.e(f"v_lshlrev_b32 v{192+i}, 16, v{64+i//2}")
            k.e(f"v_and_b32 v{193+i}, s26, v{64+i//2}")
        import math, struct
        c1 = -2 * math.sqrt(2 / math.pi) * math.log2(math.e)
        c2 = c1 * 0.044715
        f2h = lambda x: hex(struct.unpack("<I", struct.pack("<f", x))[0])
        k.e(f"s_mov_b32 s30, {f2h(c2)}\nv_mov_b32 v9, {f2h(c1)}")
        for i in range(16):
            k.e(f"v_mul_f32 v{80+i}, v{192+i}, v{192+i}")
        for i in range(16):
            k.e(f"v_fma_f32 v{80+i}, v{80+i}, s30, v9")
        for i in range(16):
            k.e(f"v_mul_f32 v{80+i}, v{80+i}, v{192+i}")
        for i in range(16):
            k.e(f"v_exp_f32 v{80+i}, v{80+i}")
        for i in range(16):
            k.e(f"v_add_f32 v{80+i}, 1.0, v{80+i}")
        for i in range(16):
            k.e(f"v_rcp_f32 v{80+i}, v{80+i}")
        for i in range(16):
            k.e(f"v_mul_f32 v{192+i}, v{192+i}, v{80+i}")
        for i in range(0, 16, 2):
            k.e(f"v_cvt_pk_bf16_f32 v{64+i//2}, v{192+i}, v{193+i}")
        k.e(f"s_mul_i32 s24, s18, {28*4*2048}\ns_lshl_b32 s25, s19, 13\ns_add_u32 s24, s24, s25")
        k.e(f"s_and_b32 s25, s21, 1\ns_lshl_b32 s25, s25, 12\ns_add_u32 s24, s24, s25\ns_add_u32 s24, s24, {UOFF}")
        k.e("buffer_store_dwordx4 v[64:67], v6, s[12:15], s24 offen")
        k.e("buffer_store_dwordx4 v[68:71], v6, s[12:15], s24 offen offset:2048")
    else:
        k.e("v_lshlrev_b32 v48, 16, v48")
        for i in range(16):
            k.e(f"v_add_f32 v{192+i}, v{192+i}, v48")
        for i in range(0, 16, 2):
            k.e(f"v_cvt_pk_bf16_f32 v{64+i//2}, v{192+i}, v{193+i}")
        k.e("v_lshlrev_b32 v8, 10, v8")
        k.e("v_lshrrev_b32 v9, 5, v2\nv_lshl_add_u32 v8, v9, 4, v8")
        k.e("s_lshl_b32 s24, s18, 7\ns_lshr_b32 s25, s21, 1\ns_lshl_b32 s25, s25, 6\ns_add_u32 s24, s24, s25")
        k.e("v_add_u32 v8, s24, v8")
        k.e("v_permlane32_swap_b32 v64, v66\nv_permlane32_swap_b32 v65, v67")
        k.e("v_permlane32_swap_b32 v68, v70\nv_permlane32_swap_b32 v69, v71")
        k.e("global_store_dwordx4 v8, v[64:67], s[28:29]")
        k.e("global_store_dwordx4 v8, v[68:71], s[28:29] offset:32")
    k.e(f"L_{name}_done:\ns_endpgm")
    return k.text()

out = HEADER
out += "; @launch kernel=ln_kernel grid=(256,1,1) block=(256,1,1) lds=8192\n"
out += "; @launch kernel=gemm1_kernel grid=(224,1,1) block=(256,1,1) lds=131072\n"
out += "; @launch kernel=gemm2_kernel grid=(256,1,1) block=(256,1,1) lds=131072\n"
out += '.amdgcn_target "amdgcn-amd-amdhsa--gfx950"\n.text\n'
out += ".globl ln_kernel\n.globl gemm1_kernel\n.globl gemm2_kernel\n"
out += ln_kernel() + gemm_kernel(1) + gemm_kernel(2)
out += '.section .rodata,"a"\n.p2align 6\n'
out += kd("ln_kernel", 72, 32, 72)
out += ".p2align 6\n" + kd("gemm1_kernel", 256, 40, 256)
out += ".p2align 6\n" + kd("gemm2_kernel", 256, 40, 256)
open(sys.argv[1], "w").write(out)
```
